```python
import torch

def _softmax(x, axis=-1):
    return torch.softmax(x, dim=axis)
def _gelu(x):
    return torch.nn.functional.gelu(x, approximate="tanh")
def _silu(x):
    return torch.nn.functional.silu(x)
def _sigmoid(x):
    return torch.sigmoid(x)
def _layernorm(x, axis=-1, eps=1e-5):
    m = x.mean(dim=axis, keepdim=True)
    v = x.var(dim=axis, keepdim=True, unbiased=False)
    return (x - m) / torch.sqrt(v + eps)
def _scatter_add(tgt, idx, src, axis=0):
    return tgt.clone().index_add_(axis, idx, src)
def _segment_sum(src, seg, n):
    out = torch.zeros((n,) + src.shape[1:], dtype=src.dtype)
    return out.index_add_(0, seg, src)
def _pad(x, pw):
    flat = tuple(v for pair in reversed(pw) for v in pair)
    return torch.nn.functional.pad(x, flat)

kernel_name = 'sequential_preLN__sliding_local_dilated__dense_activation_relu__prompt'

def setup_inputs():

    _w = (lambda a: (lambda t: t.to(torch.bfloat16) if t.is_floating_point() else t)(torch.as_tensor(a)))
    def _A_setup():
        B, S, D = 1, 2048, 448
        return {
            "x": _w((lambda *s: torch.randn(*s, dtype=torch.bfloat16) * 0.05)(B, S, D)),
            "wqkv": _w((lambda *s: torch.randn(*s, dtype=torch.bfloat16) * 0.05)(D, 3 * D)),
            "wo": _w((lambda *s: torch.randn(*s, dtype=torch.bfloat16) * 0.05)(D, D)),
        }
    _A_in = _A_setup()

    def _B_setup():
        B, S, D, Dff = 1, 2048, 448, 1792
        return {
            "x": _w((lambda *s: torch.randn(*s, dtype=torch.bfloat16) * 0.05)(B, S, D)),
            "w1": _w((lambda *s: torch.randn(*s, dtype=torch.bfloat16) * 0.05)(D, Dff)),
            "w2": _w((lambda *s: torch.randn(*s, dtype=torch.bfloat16) * 0.05)(Dff, D)),
        }
    _B_in = _B_setup()

    return {
        "A_x": _A_in["x"],
        "A_wqkv": _A_in["wqkv"],
        "A_wo": _A_in["wo"],
        "B_x": _B_in["x"],
        "B_w1": _B_in["w1"],
        "B_w2": _B_in["w2"],
    }

def reference(A_x, A_wqkv, A_wo, B_x, B_w1, B_w2):
    def _A_ref(x, wqkv, wo):
        B, S, D = x.shape
        H = 16; Dh = D // H
        W, dil = 8, 2
        qkv = (lambda x, *d: x.permute(*d))((x @ wqkv).reshape(B, S, 3, H, Dh), 2, 0, 3, 1, 4)
        q, k, v = qkv[0], qkv[1], qkv[2]
        scale = Dh ** -0.5
        pos = torch.arange(S)
        off = torch.arange(W) * dil
        idx = pos[:, None] - off[None, :]
        mask = idx >= 0
        idx_c = torch.where(mask, idx, 0).reshape(-1)
        kg = k[:, :, idx_c, :].reshape(B, H, S, W, Dh)
        vg = v[:, :, idx_c, :].reshape(B, H, S, W, Dh)
        logits = torch.einsum("bhsd,bhswd->bhsw", q, kg) * scale
        logits = torch.where(mask[None, None, :, :], logits, -1e9)
        attn = _softmax(logits, axis=-1)
        o = torch.einsum("bhsw,bhswd->bhsd", attn, vg)
        return (lambda x, *d: x.permute(*d))(o, 0, 2, 1, 3).reshape(B, S, D) @ wo

    def _B_ref(x, w1, w2):
        h = torch.einsum("bsd,df->bsf", x, w1)
        zero = torch.zeros_like(h)
        h = torch.maximum(h, zero)
        return torch.einsum("bsf,fd->bsd", h, w2)

    x = A_x
    h = x + _A_ref(_layernorm(x, axis=-1), A_wqkv, A_wo)
    h2 = h + _B_ref(_layernorm(h, axis=-1), B_w1, B_w2)
    return h2
```

```python
import re, copy

TRANS = ('v_exp_f32','v_log_f32','v_rcp_f32','v_rsq_f32','v_sqrt_f32','v_sin_f32','v_cos_f32','v_rcp_iflag_f32')
_R1 = re.compile(r'^([vas])(\d+)$')
_RN = re.compile(r'^([vas])\[(\d+):(\d+)\]$')

def regs_of(op):
    op = op.strip()
    if op.startswith('-'): op = op[1:]
    if op.startswith('|') and op.endswith('|'): op = op[1:-1]
    if op.startswith('abs(') and op.endswith(')'): op = op[4:-1]
    m = _R1.match(op)
    if m: return [m.group(1)+m.group(2)]
    m = _RN.match(op)
    if m: return [m.group(1)+str(i) for i in range(int(m.group(2)), int(m.group(3))+1)]
    if op in ('vcc','vcc_lo','vcc_hi'): return ['vcc']
    if op in ('exec','exec_lo','exec_hi'): return ['exec']
    if op == 'm0': return ['m0']
    return []

class Ins:
    __slots__=('text','mnem','ops','mods','kind','reads','writes','srcA','srcC','passes','async_dst','label','target','lds_dma','wide_store','is_dpp','tag','nopn','comment')
    def __init__(self, text):
        self.text = text
        self.tag = None
        self.comment = None
        t = text.strip()
        self.label = None; self.target = None
        self.reads = set(); self.writes = set(); self.srcA=set(); self.srcC=set()
        self.passes = 0; self.async_dst = set(); self.lds_dma=False; self.wide_store=False; self.is_dpp=False
        self.nopn = 0; self.ops=[]; self.mods=''
        if t.endswith(':'):
            self.kind='label'; self.label=t[:-1]; self.mnem=''; return
        if t.startswith('.') or t.startswith(';'):
            self.kind='directive'; self.mnem=''; return
        sp = t.split(None,1)
        self.mnem = sp[0]
        rest = sp[1] if len(sp)>1 else ''
        parts=[]; depth=0; cur=''
        for ch in rest:
            if ch in '[(': depth+=1
            if ch in '])': depth-=1
            if ch==',' and depth==0: parts.append(cur.strip()); cur=''
            else: cur+=ch
        if cur.strip(): parts.append(cur.strip())
        if parts:
            last = parts[-1].split()
            parts[-1] = last[0]
            self.mods = ' '.join(last[1:])
        self.ops = parts
        m = self.mnem
        R = lambda i: set(regs_of(parts[i])) if i < len(parts) else set()
        allsrc = lambda k: set().union(*[R(i) for i in range(k,len(parts))]) if len(parts)>k else set()
        if m.startswith('v_mfma'):
            self.kind='mfma'
            self.passes = 8 if '32x32' in m else 4
            self.writes=R(0); self.srcA=R(1)|R(2); self.srcC=R(3); self.reads=self.srcA|self.srcC
        elif m.startswith('v_cmp'):
            self.kind='valu'; self.writes=R(0); self.reads=allsrc(1)|{'exec'}
            if m.startswith('v_cmpx'): self.writes|={'exec'}
        elif m.startswith('v_permlane') and 'swap' in m:
            self.kind='valu'; self.writes=R(0)|R(1); self.reads=R(0)|R(1)
        elif m.startswith('v_readfirstlane') or m.startswith('v_readlane'):
            self.kind='valu'; self.writes=R(0); self.reads=allsrc(1)
        elif m.startswith('v_'):
            base = m.replace('_e32','').replace('_e64','').replace('_dpp','')
            self.kind = 'trans' if base in TRANS else 'valu'
            self.writes=R(0); self.reads=allsrc(1)
            if base.startswith('v_fmac') or base.startswith('v_dot2c') or base.startswith('v_pk_fmac') or base.startswith('v_writelane'):
                self.reads|=R(0)
            if m.endswith('_dpp') or 'row_' in self.mods or 'quad_perm' in self.mods:
                self.is_dpp=True; self.reads|=R(0)
            if base.startswith('v_add_co') or base.startswith('v_sub_co') or base.startswith('v_addc_co'):
                self.writes|=R(1); self.reads=allsrc(2)
            if base=='v_cndmask_b32' and len(parts)==3: self.reads|={'vcc'}
        elif m.startswith('ds_'):
            self.kind='ds'
            if m.startswith('ds_read') or m.startswith('ds_bpermute') or m.startswith('ds_permute') or m.startswith('ds_swizzle'):
                self.writes=R(0); self.async_dst=R(0); self.reads=allsrc(1)
            else:
                self.reads=allsrc(0)
        elif m.startswith('buffer_') or m.startswith('global_'):
            self.kind='vmem'
            mods = self.mods.split()
            if m in ('buffer_inv','buffer_wbl2'):
                pass
            elif 'lds' in mods or m.startswith('global_load_lds'):
                self.lds_dma=True; self.reads=allsrc(0)|{'m0'}
            elif '_load' in m:
                self.writes=R(0); self.async_dst=R(0); self.reads=allsrc(1)
            elif '_store' in m:
                if m.startswith('buffer_'):
                    self.reads=allsrc(0); data=R(0)
                else:
                    self.reads=allsrc(0); data=R(1)
                if 'x4' in m or 'x3' in m: self.wide_store=True; self.srcA=data
            elif '_atomic' in m:
                self.reads=allsrc(0)
                if 'sc0' in mods:
                    self.writes=R(0); self.async_dst=R(0)
            else: raise ValueError(text)
        elif m.startswith('s_load') or m in ('s_memtime','s_memrealtime'):
            self.kind='smem'; self.writes=R(0); self.reads=allsrc(1)
        elif m=='s_waitcnt': self.kind='wait'
        elif m=='s_nop': self.kind='nop'; self.nopn=int(parts[0],0)+1
        elif m=='s_barrier': self.kind='barrier'
        elif m=='s_endpgm': self.kind='endpgm'
        elif m=='s_branch' : self.kind='branch'; self.target=parts[0]
        elif m.startswith('s_cbranch'):
            self.kind='branch'; self.target=parts[0]
            if 'scc' in m: self.reads={'scc'}
            if 'vcc' in m: self.reads={'vcc'}
            if 'exec' in m: self.reads={'exec'}
        elif m.startswith('s_cmp') or m.startswith('s_bitcmp'):
            self.kind='salu'; self.reads=allsrc(0); self.writes={'scc'}
        elif m in ('s_setprio','s_sleep','s_sethalt'):
            self.kind='salu'
        elif m.startswith('s_'):
            self.kind='salu'; self.writes=R(0); self.reads=allsrc(1)
            if m.startswith('s_getreg'): self.reads=set()
            if 'saveexec' in m: self.writes|={'exec','scc'}; self.reads|={'exec'}
            if m.startswith(('s_add','s_sub','s_and','s_or','s_xor','s_lshl','s_lshr','s_ashr','s_min','s_max','s_not','s_bfe','s_andn2','s_orn2','s_mul_i32')) and not m.startswith('s_mul'):
                self.writes|={'scc'}
            if m.startswith(('s_addc','s_subb','s_cselect','s_cmov')): self.reads|={'scc'}
            if m.startswith(('s_addk','s_mulk')): self.reads|=R(0)
        else:
            raise ValueError('unknown instruction: '+text)

class Asm:
    def __init__(self):
        self.ins=[]
        self.vmq=[]
        self.lgq=[]
        self.uid=0
        self.nwaits=0
    def snapshot(self): return (copy.deepcopy(self.vmq), copy.deepcopy(self.lgq))
    def restore(self, s): self.vmq=copy.deepcopy(s[0]); self.lgq=copy.deepcopy(s[1])
    def same_state(self, s):
        return [ (t,d) for t,d in self.vmq]==[(t,d) for t,d in s[0]] and self.lgq==s[1]
    def _emit_wait(self, vm=None, lg=None):
        parts=[]
        if vm is not None:
            parts.append('vmcnt(%d)'%min(vm,63))
            keep=min(vm,63)
            if len(self.vmq)>keep: self.vmq=self.vmq[len(self.vmq)-keep:] if keep>0 else []
        if lg is not None:
            parts.append('lgkmcnt(%d)'%min(lg,15))
            keep=min(lg,15)
            if len(self.lgq)>keep: self.lgq=self.lgq[len(self.lgq)-keep:] if keep>0 else []
        if parts:
            self.ins.append(Ins('s_waitcnt '+' '.join(parts))); self.nwaits+=1
    def __call__(self, text, tag=None):
        for line in text.split('\n'):
            line=line.strip()
            if not line: continue
            self._one(line, tag)
    def _one(self, line, tag):
        c=None
        if ';' in line and not line.startswith(';'):
            line, c = line.split(';',1); line=line.strip()
        I=Ins(line); I.tag=tag; I.comment=c
        if I.kind=='wait':
            vm=re.search(r'vmcnt\((\d+)\)',line); lg=re.search(r'lgkmcnt\((\d+)\)',line)
            self._emit_wait(int(vm.group(1)) if vm else None, int(lg.group(1)) if lg else None)
            return
        if I.kind not in ('label','directive'):
            touched = I.reads|I.writes
            vm=None; lg=None
            for i,(t,d) in enumerate(self.vmq):
                if d & touched: vm=len(self.vmq)-1-i
            for i,(t,d,w) in enumerate(self.lgq):
                if d & touched: lg=len(self.lgq)-1-i
            if vm is not None or lg is not None: self._emit_wait(vm,lg)
        self.ins.append(I)
        if I.kind=='vmem' and I.mnem not in ('buffer_inv','buffer_wbl2'):
            self.vmq.append((tag, frozenset(I.async_dst)))
        elif I.kind=='vmem':
            self.vmq.append((tag, frozenset()))
        elif I.kind=='ds':
            self.lgq.append((tag, frozenset(I.async_dst), not I.async_dst))
    def wait_vm(self, tag):
        tags = tag if isinstance(tag,(list,tuple,set)) else [tag]
        idx=-1
        for i,(t,d) in enumerate(self.vmq):
            if t in tags: idx=i
        if idx>=0: self._emit_wait(vm=len(self.vmq)-1-idx)
    def wait_vm_all(self):
        if self.vmq: self._emit_wait(vm=0)
    def wait_lg_all(self):
        if self.lgq: self._emit_wait(lg=0)
    def wait_lg(self, tag):
        idx=-1
        for i,(t,d,w) in enumerate(self.lgq):
            if t==tag: idx=i
        if idx>=0: self._emit_wait(lg=len(self.lgq)-1-idx)
    def barrier(self):
        idx=-1
        for i,(t,d,w) in enumerate(self.lgq):
            if w: idx=i
        if idx>=0: self._emit_wait(lg=len(self.lgq)-1-idx)
        self('s_barrier')
    def comment(self, s): self.ins.append(Ins('; '+s))
    def label(self, s): self.ins.append(Ins(s+':'))
    @staticmethod
    def _need(p, c):
        n=0
        pk=p.kind; ck=c.kind
        pw=p.writes
        valu_like = pk in ('valu','trans')
        if valu_like:
            vg = {r for r in pw if r[0] in 'va' and r!='vcc'}
            sg = {r for r in pw if r not in vg}
            if vg:
                if ck=='mfma' and (vg & c.reads): n=max(n,2)
                if ck in ('valu','trans'):
                    if c.mnem.startswith('v_permlane') and (vg & c.reads): n=max(n,2)
                    if c.is_dpp and (vg & c.reads): n=max(n,2)
                    if (c.mnem.startswith('v_readfirstlane') or c.mnem.startswith('v_readlane')) and (vg & c.reads): n=max(n,1)
                    if pk=='trans' and (vg & c.reads): n=max(n,1)
                    if p.mnem.startswith('v_dot2') and (vg & (c.reads|c.writes)) and not (c.mnem==p.mnem): n=max(n,3)
                    if p.mnem.startswith('v_dot2') and c.mnem==p.mnem:
                        a=set()
                        for o in c.ops[1:3]: a|=set(regs_of(o))
                        if vg & a: n=max(n,3)
                if p.mnem.startswith('v_dot2') and ck in ('ds','vmem','mfma') and (vg & (c.reads|c.writes)): n=max(n,3)
                if pk=='trans' and ck=='mfma' and (vg & c.reads): n=max(n,2)
            if sg:
                if ck in ('valu','trans','mfma') and (sg & c.reads):
                    n=max(n,2)
                    if c.mnem.startswith(('v_readlane','v_writelane')): n=max(n,4)
                if ck=='vmem' and (sg & c.reads): n=max(n,5)
                if 'exec' in sg and ck in ('valu','trans','mfma','ds','vmem'): n=max(n,5)
                if ck=='salu' and (sg & c.reads): n=max(n,1)
                if ck=='branch' and (sg & c.reads): n=max(n,5)
        if pk=='mfma':
            P=p.passes
            raw_any = {4:8,8:12}[P]; partial={4:6,8:10}[P]
            if ck=='mfma':
                if pw & c.srcA: n=max(n,raw_any)
                if pw & c.srcC:
                    if not (c.srcC==pw and c.passes==P): n=max(n,partial)
                if (pw & c.writes) and not (c.writes==pw and c.srcC==pw and c.passes==P):
                    n=max(n,partial)
            elif ck in ('valu','trans'):
                if pw & (c.reads|c.writes): n=max(n,raw_any)
                if p.srcC & c.writes: n=max(n,{4:3,8:7}[P])
            elif ck in ('ds','vmem'):
                if pw & (c.reads|c.writes): n=max(n,raw_any)
                if p.srcC & c.writes: n=max(n,{4:3,8:7}[P])
        if pk=='salu' and 'm0' in pw and ck=='vmem' and c.lds_dma: n=max(n,1)
        if pk=='vmem' and p.wide_store:
            if ck in ('valu','trans') and (p.srcA & c.writes): n=max(n,2)
            elif (p.srcA & c.writes): n=max(n,1)
        return n
    def pad_hazards(self):
        ins=self.ins
        MAXD=13
        changed=True; it=0
        while changed:
            changed=False; it+=1
            labels={I.label:i for i,I in enumerate(ins) if I.kind=='label'}
            preds={}
            for i,I in enumerate(ins):
                if I.kind=='branch' and I.target in labels: preds.setdefault(labels[I.target],[]).append(i)
            out=[]
            def back(i, dist, c, seen):
                need=0
                j=i-1
                while j>=0 and dist<MAXD:
                    p=ins[j]
                    if p.kind=='label':
                        for b in preds.get(j,[]):
                            if (b,dist) not in seen:
                                seen.add((b,dist))
                                need=max(need, back(b, dist+1, c, seen))
                        j-=1; continue
                    if p.kind=='directive': j-=1; continue
                    if p.kind in ('endpgm',) or (p.kind=='branch' and p.mnem=='s_branch'):
                        break
                    r=self._need(p,c)
                    if r>dist: need=max(need,r-dist)
                    dist += p.nopn if p.kind=='nop' else 1
                    j-=1
                return need
            for i,I in enumerate(ins):
                if I.kind in ('label','directive','nop','wait','barrier','endpgm'):
                    out.append(I); continue
                need=back(i,0,I,set())
                if need>0:
                    while need>0:
                        k=min(need,16); out.append(Ins('s_nop %d'%(k-1))); need-=k
                    changed=True
                out.append(I)
            self.ins=ins=out
            if it>20: raise RuntimeError('hazard padding did not converge')
    def text(self):
        L=[]
        for I in self.ins:
            if I.kind=='label' : L.append(I.text)
            elif I.kind=='directive': L.append(I.text)
            else: L.append('    '+I.text+(('   ;'+I.comment) if I.comment else ''))
        return '\n'.join(L)+'\n'
    def stats(self):
        from collections import Counter
        c=Counter(I.kind for I in self.ins)
        nops=sum(I.nopn for I in self.ins if I.kind=='nop')
        return dict(c), nops

def v(i,n=1): return 'v%d'%i if n==1 else 'v[%d:%d]'%(i,i+n-1)
def a(i,n=1): return 'a%d'%i if n==1 else 'a[%d:%d]'%(i,i+n-1)
def s(i,n=1): return 's%d'%i if n==1 else 's[%d:%d]'%(i,i+n-1)

def interleave(mf, fill, per=None):
    out=[]; k=0; n=len(mf)
    for i,m in enumerate(mf):
        out.append(m)
        tgt=(i+1)*len(fill)//n
        while k<tgt: out.append(fill[k]); k+=1
    return out
```

```python
from asmlib import *
NAME='sequential_preLN__sliding_local_dilated__dense_activation_relu__prompt'
HEADER='''; Kernarg layout for this problem (72 bytes, ptrs only, base s[0:1]):
'''
def kernel_text(name, body, vgpr=256, accum=256, sgpr=102):
    return f'''.text
.globl {name}
.p2align 8
.type {name},@function
{name}:
{body}
.section .rodata,"a"
.p2align 6
.amdhsa_kernel {name}
  .amdhsa_next_free_vgpr {vgpr}
  .amdhsa_next_free_sgpr {sgpr}
  .amdhsa_accum_offset {accum}
  .amdhsa_group_segment_fixed_size 0
  .amdhsa_kernarg_size 72
  .amdhsa_user_sgpr_count 2
  .amdhsa_user_sgpr_kernarg_segment_ptr 1
  .amdhsa_system_sgpr_workgroup_id_x 1
  .amdhsa_float_denorm_mode_32 3
.end_amdhsa_kernel
'''
def file_text(launch_lines, kernels):
    return HEADER+''.join(l+'\n' for l in launch_lines)+'.amdgcn_target "amdgcn-amd-amdhsa--gfx950"\n'+''.join(kernels)
```

```python
from common import *
import sys

WS_SYNC=0x0
WS_GRAN=0x10000
WS_ST2 =0x20000
WS_O   =0x100000
WS_H   =0x300000
WS_H1  =0x500000
WS_DBG =0xD00000
WS_SIZE=0x1000000

sX=4; sWQ=8; sWO=12; sW1=16; sW2=20; sOUT=24; sWS=28
sG=32; sC=33; sW=34; sT=35; sXCC=36; sFAST=37
sR0=38
sA=40

SLOT=30720
MISC=100352
WOB=105984
KX=61440; VX=66560
LDS_BYTES=163840

NEG=0xF149F2CA

def slot_base(stage): return ((stage+2)%3)*SLOT

def prologue(A, need=('x','wq','wo','w1','w2','out','ws')):
    A('s_cmp_ge_u32 s2, 256')
    A('s_cbranch_scc1 L_end')
    for nm,reg,off,size in (('x',sX,0,1835008),('wq',sWQ,8,1204224),('wo',sWO,16,401408),('w1',sW1,32,1605632),('w2',sW2,40,1605632),('out',sOUT,48,1835008),('ws',sWS,64,WS_SIZE)):
        A(f's_load_dwordx2 s[{reg}:{reg+1}], s[0:1], {off}')
        A(f's_mov_b32 s{reg+2}, {size}')
        A(f's_mov_b32 s{reg+3}, 0x20000')
    A(f'''s_and_b32 s{sA}, s2, 7
s_lshr_b32 s{sA+1}, s2, 3
s_and_b32 s{sC}, s{sA+1}, 15
s_lshr_b32 s{sA+1}, s{sA+1}, 4
s_lshl_b32 s{sA}, s{sA}, 1
s_add_u32 s{sG}, s{sA}, s{sA+1}
s_lshl_b32 s{sR0}, s{sG}, 7
v_lshrrev_b32 v1, 6, v0
v_and_b32 v0, 63, v0
v_readfirstlane_b32 s{sW}, v1
s_getreg_b32 s{sXCC}, hwreg(HW_REG_XCC_ID, 0, 4)''')

class PA:
    XE=1; XO=2; XH=3; WD=4; OWN0=5; OWN1=6; HAL0=7; HAL1=8
    WT0=9; WT1=10; E0=11; E1=12; WT0H=13; WT1H=14; E0H=15; E1H=16
    M=17; G4=18; T0=19; T1=20; T2=21; T3=22; GRO=23; CSW0=24; CSW1=25; CSR=26; HALW=27; VW0=28; VW1=29; KXA=30; OST=31
    ACC=32
    FR=(88,132)
    GR=176
    SR=192
    EV=208; PF=209
    VR0=210; VR1=211; GSO=212

def accQ(T,t): return PA.ACC+(T*2+t)*4
def accK(T,t): return PA.ACC+16+(T*2+t)*4
def accV(T,t): return PA.ACC+32+(T*2+t)*4
accE0=PA.ACC+48; accE1=PA.ACC+52

def phaseA_setup(A):
    P=PA
    A(f'''v_and_b32 v{P.M}, 15, v0
v_lshrrev_b32 v{P.G4}, 4, v0''')
    A(f'''s_lshl_b32 s{sA}, s{sG}, 12
v_mov_b32 v{P.T0}, s{sA}''')
    A(f'''s_mul_i32 s{sA+1}, s{sC}, 9
s_lshl_b32 s{sA+2}, s{sW}, 2
v_add_u32 v{P.T1}, s{sA+2}, v{P.G4}          ; 4w+jr
v_add_u32 v{P.T2}, s{sA+1}, v{P.T1}          ; rho
s_sub_u32 s{sA+3}, s{sR0}, 16
v_add_u32 v{P.T3}, s{sA+3}, v{P.T2}
s_movk_i32 s{sA+4}, 896
v_mul_lo_u32 v{P.T3}, v{P.T3}, s{sA+4}
v_lshl_add_u32 v{P.T3}, v{P.M}, 4, v{P.T3}
v_cmp_gt_u32 vcc, 9, v{P.T1}
v_cmp_gt_u32 s[{sA+6}:{sA+7}], 14, v{P.M}
s_and_b64 vcc, vcc, s[{sA+6}:{sA+7}]
v_mov_b32 v{P.GRO}, 0x80000000
v_cndmask_b32 v{P.T3}, v{P.GRO}, v{P.T3}, vcc''')
    A(f'''v_lshlrev_b32 v{P.T2}, 4, v{P.T2}
s_add_u32 s{sA+5}, s{sA}, {WS_GRAN}
v_add_u32 v{P.T2}, s{sA+5}, v{P.T2}
v_cmp_gt_u32 vcc, 9, v{P.T1}
v_cmp_eq_u32 s[{sA+6}:{sA+7}], 0, v{P.M}
s_and_b64 vcc, vcc, s[{sA+6}:{sA+7}]
v_cndmask_b32 v{P.GSO}, v{P.GRO}, v{P.T2}, vcc''')
    A('s_waitcnt lgkmcnt(0)')
    A(f'buffer_load_dword v{P.EV}, v{P.T0}, s[{sWS}:{sWS+3}], 0 offen sc1', tag='E')
    for q in range(4):
        A(f'buffer_load_dwordx4 v[{P.SR+4*q}:{P.SR+4*q+3}], v{P.T3}, s[{sX}:{sX+3}], 0 offen offset:{224*q}', tag='SR')
    A(f'''v_lshrrev_b32 v{P.T0}, 3, v0
v_mul_u32_u24 v{P.T0}, 896, v{P.T0}
v_and_b32 v{P.T1}, 7, v0
v_xor_b32 v{P.T2}, v{P.T1}, v{P.G4}
v_lshl_add_u32 v{P.XE}, v{P.T2}, 4, v{P.T0}
v_xor_b32 v{P.XO}, 64, v{P.XE}''')
    A(f'''s_lshl_b32 s{sA+1}, s{sW}, 1
v_add_u32 v{P.T2}, s{sA+1}, v{P.G4}
v_and_b32 v{P.T2}, 7, v{P.T2}
v_xor_b32 v{P.T2}, v{P.T1}, v{P.T2}
v_lshl_add_u32 v{P.XH}, v{P.T2}, 4, v{P.T0}
s_add_u32 s{sA+1}, s{sA+3}, s{sA+2}
s_mul_i32 s{sA+1}, s{sA+1}, 896
v_add_u32 v{P.XH}, s{sA+1}, v{P.XH}''')
    A(f'''s_lshr_b32 s{sA+1}, s{sW}, 1
s_lshl_b32 s{sA+1}, s{sA+1}, 5
s_and_b32 s{sA+4}, s{sW}, 1
s_lshl_b32 s{sA+5}, s{sA+4}, 2
s_add_u32 s{sA+1}, s{sA+1}, s{sA+5}
v_lshrrev_b32 v{P.T0}, 2, v0
v_and_b32 v{P.T0}, 3, v{P.T0}
v_lshl_add_u32 v{P.T0}, v{P.G4}, 3, v{P.T0}
v_add_u32 v{P.T0}, s{sA+1}, v{P.T0}
v_mul_u32_u24 v{P.T0}, 2688, v{P.T0}
v_and_b32 v{P.T1}, 1, v{P.G4}
v_lshlrev_b32 v{P.T1}, 1, v{P.T1}
v_and_b32 v{P.T2}, 3, v0
v_xor_b32 v{P.T2}, v{P.T2}, v{P.T1}
v_lshl_add_u32 v{P.T0}, v{P.T2}, 4, v{P.T0}
s_mul_i32 s{sA+1}, s{sC}, 56
v_add_u32 v{P.WD}, s{sA+1}, v{P.T0}''')
    A(f'''s_lshl_b32 s{sA+1}, s{sW}, 5
s_add_u32 s{sA+1}, s{sA+1}, s{sR0}
s_mul_i32 s44, s{sA+1}, 896
s_add_u32 s45, s44, {8*896}
s_add_u32 s46, s44, {16*896}
s_add_u32 s47, s44, {24*896}
s_lshl_b32 s48, s{sW}, 12
s_add_u32 s48, s48, 2048
s_lshl_b32 s49, s{sW}, 9
s_mul_i32 s50, s{sW}, 3072
s_add_u32 s50, s50, 18432
s_mov_b32 s52, -1
s_mov_b32 s53, 0
s_cmp_eq_u32 s{sW}, 0
s_cselect_b32 s52, 0xffffff00, s52''')
    A(f'''v_and_b32 v{P.T0}, 7, v0
v_lshlrev_b32 v{P.T0}, 4, v{P.T0}
v_mov_b32 v{P.FR[1]}, 0x3f803f80
v_mov_b32 v{P.FR[1]+1}, 0x3f803f80
v_mov_b32 v{P.FR[1]+2}, 0x3f803f80
v_mov_b32 v{P.FR[1]+3}, 0x3f803f80
ds_write_b128 v{P.T0}, v[{P.FR[1]}:{P.FR[1]+3}]
ds_write_b128 v{P.T0}, v[{P.FR[1]}:{P.FR[1]+3}] offset:{SLOT}
ds_write_b128 v{P.T0}, v[{P.FR[1]}:{P.FR[1]+3}] offset:{2*SLOT}''')

def dmaA(stage):
    P=PA; SB=slot_base(stage); L=[]
    tag=f'st{stage}'
    for n in range(4):
        vv = P.XE if n%2==0 else P.XO
        L.append((f's_add_u32 m0, s48, {SB+1024*n-128*stage}',None))
        L.append((f'buffer_load_dwordx4 v{vv}, s[{sX}:{sX+3}], s{44+n} offen offset:{128*stage} lds',tag))
    L.append((f's_mov_b32 s54, {stage*64*2688}',None))
    for seg in range(3):
        L.append((f's_add_u32 m0, s50, {SB+1024*seg-896*seg}',None))
        L.append((f'buffer_load_dwordx4 v{P.WD}, s[{sWQ}:{sWQ+3}], s54 offen offset:{896*seg} lds',tag))
    L.append((f's_mov_b32 s55, {stage*128}',None))
    L.append((f's_add_u32 m0, s49, {SB}',None))
    L.append((f's_mov_b64 exec, s[52:53]',None))
    L.append((f'buffer_load_dwordx4 v{P.XH}, s[{sX}:{sX+3}], s55 offen lds',tag))
    L.append((f's_mov_b64 exec, -1',None))
    return L

def phaseA_setup2(A):
    P=PA
    A(f'''v_lshrrev_b32 v{P.T0}, 1, v{P.M}
v_xor_b32 v{P.T0}, v{P.T0}, v{P.G4}
v_lshlrev_b32 v{P.T0}, 4, v{P.T0}
v_lshl_add_u32 v{P.HAL0}, v{P.M}, 7, v{P.T0}
v_xor_b32 v{P.HAL1}, 64, v{P.HAL0}
v_add_u32 v{P.OWN0}, s48, v{P.HAL0}
v_add_u32 v{P.OWN1}, s48, v{P.HAL1}''')
    A(f'''v_lshrrev_b32 v{P.T0}, 2, v0
v_lshlrev_b32 v{P.T0}, 6, v{P.T0}
v_bfe_u32 v{P.T1}, v0, 1, 1
v_bfe_u32 v{P.T2}, v0, 4, 1
v_lshlrev_b32 v{P.T2}, 1, v{P.T2}
v_xor_b32 v{P.T1}, v{P.T1}, v{P.T2}
v_lshl_add_u32 v{P.T0}, v{P.T1}, 4, v{P.T0}
v_and_b32 v{P.T1}, 1, v0
v_lshl_add_u32 v{P.T0}, v{P.T1}, 3, v{P.T0}
s_lshl_b32 s{sA}, s{sW}, 11
s_add_u32 s{sA}, s{sA}, {VX}
v_add_u32 v{P.VR0}, s{sA}, v{P.T0}
v_xor_b32 v{P.VR1}, 32, v{P.VR0}
v_add_u32 v{P.WT0}, 18432, v{P.T0}
v_xor_b32 v{P.WT1}, 32, v{P.WT0}
s_and_b32 s{sA}, s{sW}, 1
s_lshl_b32 s{sA}, s{sA}, 5
v_xor_b32 v{P.E1}, s{sA}, v{P.WT0}
s_lshr_b32 s{sA}, s{sW}, 1
s_add_u32 s{sA}, s{sA}, 1
s_lshl_b32 s{sA}, s{sA}, 10
v_add_u32 v{P.E0}, s{sA}, v{P.E1}
v_add_u32 v{P.WT0H}, {2*SLOT}, v{P.WT0}
v_add_u32 v{P.WT1H}, {2*SLOT}, v{P.WT1}
v_add_u32 v{P.E0H}, {2*SLOT}, v{P.E0}
v_add_u32 v{P.E1H}, {2*SLOT}, v{P.E1}''')
    A(f'''v_lshlrev_b32 v{P.T0}, 4, v{P.G4}
v_add_u32 v{P.CSR}, {MISC}, v{P.T0}
s_add_u32 s{sA}, s{sW}, 2
s_lshl_b32 s{sA}, s{sA}, 6
v_add_u32 v{P.CSW0}, s{sA}, v{P.CSR}
s_and_b32 s{sA}, s{sW}, 1
s_lshl_b32 s{sA}, s{sA}, 6
v_add_u32 v{P.CSW1}, s{sA}, v{P.CSR}''')
    A(f'''v_lshrrev_b32 v{P.T0}, 1, v{P.G4}
v_bfe_u32 v{P.T1}, v{P.M}, 2, 1
v_lshlrev_b32 v{P.T1}, 1, v{P.T1}
v_xor_b32 v{P.T0}, v{P.T0}, v{P.T1}
v_lshlrev_b32 v{P.T0}, 4, v{P.T0}
v_lshl_add_u32 v{P.T0}, v{P.M}, 6, v{P.T0}
v_and_b32 v{P.T1}, 1, v{P.G4}
v_lshl_add_u32 v{P.T0}, v{P.T1}, 3, v{P.T0}
s_lshl_b32 s{sA}, s{sW}, 11
s_add_u32 s{sA}, s{sA}, {VX+1024}
v_add_u32 v{P.VW0}, s{sA}, v{P.T0}
v_xor_b32 v{P.VW1}, 32, v{P.VW0}
s_and_b32 s{sA}, s{sW}, 1
s_lshl_b32 s{sA+1}, s{sA}, 5
v_xor_b32 v{P.T0}, s{sA+1}, v{P.T0}
v_add_u32 v{P.T0}, {VX}, v{P.T0}
v_lshlrev_b32 v{P.KXA}, 4, v0
s_lshl_b32 s{sA+1}, s{sA}, 3
s_add_u32 s{sA+1}, s{sA+1}, {KX}
v_add_u32 v{P.T1}, s{sA+1}, v{P.KXA}
s_cmp_lt_u32 s{sW}, 2
s_cselect_b64 vcc, -1, 0
v_cndmask_b32 v{P.HALW}, v{P.T0}, v{P.T1}, vcc
s_lshl_b32 s{sA}, s{sW}, 10
s_add_u32 s{sA}, s{sA}, {KX}
v_add_u32 v{P.KXA}, s{sA}, v{P.KXA}              ; KX + w*1024 + l*16''')
    A(f'''s_lshl_b32 s{sA}, s{sG}, 12
s_add_u32 s{sA}, s{sA}, {WS_GRAN}
v_lshlrev_b32 v{P.GRO}, 4, v{P.M}
v_add_u32 v{P.GRO}, s{sA}, v{P.GRO}''')
    A(f'''s_lshl_b32 s{sA}, s{sG}, 17
s_lshl_b32 s{sA+1}, s{sW}, 15
s_add_u32 s{sA}, s{sA}, s{sA+1}
s_lshl_b32 s{sA+1}, s{sC}, 10
s_add_u32 s{sA}, s{sA}, s{sA+1}
s_add_u32 s{sA}, s{sA}, {WS_O}
v_lshlrev_b32 v{P.OST}, 4, v0
v_add_u32 v{P.OST}, s{sA}, v{P.OST}''')
    for r in range(56): A(f'v_mov_b32 v{P.ACC+r}, 0')

def phaseA_stats(A):
    P=PA
    S1=P.T0; S2=P.T1; ONE=P.T2
    A(f'''v_readfirstlane_b32 s{sT}, v{P.EV}
s_mul_i32 s{sT}, s{sT}, 0x9E3779B1
s_add_u32 s{sT}, s{sT}, 0x7F4A7C15
v_mov_b32 v{S1}, 0
v_mov_b32 v{S2}, 0
v_mov_b32 v{ONE}, 0x3f803f80''')
    for r in range(16):
        A(f'v_dot2c_f32_bf16 v{S1}, v{P.SR+r}, v{ONE}')
        A(f'v_dot2c_f32_bf16 v{S2}, v{P.SR+r}, v{P.SR+r}')
    for sh in (8,4,2,1):
        A(f'v_add_f32_dpp v{S1}, v{S1}, v{S1} row_ror:{sh} row_mask:0xf bank_mask:0xf')
        A(f'v_add_f32_dpp v{S2}, v{S2}, v{S2} row_ror:{sh} row_mask:0xf bank_mask:0xf')
    G=P.SR
    A(f'''v_mul_f32 v{S1}, {1.0/448.0!r}, v{S1}        ; mean
v_mul_f32 v{S2}, {1.0/448.0!r}, v{S2}
v_fma_f32 v{S2}, -v{S1}, v{S1}, v{S2}          ; var
v_max_f32 v{S2}, 0, v{S2}
v_add_f32 v{S2}, 0x3727c5ac, v{S2}             ; + 1e-5
v_rsq_f32 v{G+1}, v{S2}
v_mov_b32 v{G+2}, s{sT}
v_mov_b32 v{G+3}, s{sXCC}
v_mul_f32 v{G}, -v{S1}, v{G+1}
buffer_store_dwordx4 v[{G}:{G+3}], v{P.GSO}, s[{sWS}:{sWS+3}], 0 offen sc1''', tag='GRS')

def readsA(ks):
    P=PA; st=ks>>1; s2=ks&1; SB=slot_base(st); F=P.FR[ks&1]
    hi = SB==2*SLOT
    own = P.OWN0 if s2==0 else P.OWN1
    hal = P.HAL0 if s2==0 else P.HAL1
    wt=(P.WT0H,P.WT1H) if hi else (P.WT0,P.WT1)
    e0=P.E0H if hi else P.E0; e1=P.E1H if hi else P.E1
    wb = 0 if hi else SB
    L=[]
    def tr(dst,addr,seg):
        for hh in range(2):
            L.append(f'ds_read_b64_tr_b16 v[{dst+2*hh}:{dst+2*hh+1}], v{addr} offset:{wb+(s2*2+hh)*3072+seg*1024}')
    L.append(f'ds_read_b128 v[{F}:{F+3}], v{own} offset:{SB}')
    tr(F+12,wt[0],0)
    L.append(f'ds_read_b128 v[{F+4}:{F+7}], v{own} offset:{SB+2048}')
    tr(F+16,wt[1],0)
    tr(F+20,wt[0],1); tr(F+24,wt[1],1)
    tr(F+28,wt[0],2); tr(F+32,wt[1],2)
    L.append(f'ds_read_b128 v[{F+8}:{F+11}], v{hal} offset:{SB}')
    tr(F+36,e0,0); tr(F+40,e1,0)
    return L

def mfmasA(ks):
    P=PA; F=P.FR[ks&1]; L=[]
    for j,acc in enumerate((accQ,accQ,accK,accK,accV,accV)):
        t=j&1; W=F+12+4*j
        for T in range(2):
            d=acc(T,t); L.append(f'v_mfma_f32_16x16x32_bf16 v[{d}:{d+3}], v[{W}:{W+3}], v[{F+4*T}:{F+4*T+3}], v[{d}:{d+3}]')
    L.append(f'v_mfma_f32_16x16x32_bf16 v[{accE0}:{accE0+3}], v[{F+36}:{F+39}], v[{F+8}:{F+11}], v[{accE0}:{accE0+3}]')
    L.append(f'v_mfma_f32_16x16x32_bf16 v[{accE1}:{accE1+3}], v[{F+40}:{F+43}], v[{F+8}:{F+11}], v[{accE1}:{accE1+3}]')
    return L

def emit_mixed(A, mf, fills):
    n=len(mf); k=0
    for i,m in enumerate(mf):
        A(m)
        tgt=(i+1)*len(fills)//n
        while k<tgt:
            f=fills[k]; k+=1
            if isinstance(f,tuple): A(f[0],tag=f[1])
            else: A(f)

def granule_loads(A):
    P=PA
    A(f'''s_lshl_b32 s{sA}, s{sW}, 9
s_add_u32 s{sA}, s{sA}, 256''')
    A(f'buffer_load_dwordx4 v[{P.GR}:{P.GR+3}], v{P.GRO}, s[{sWS}:{sWS+3}], s{sA} offen sc1',tag='GR')
    A(f'buffer_load_dwordx4 v[{P.GR+4}:{P.GR+7}], v{P.GRO}, s[{sWS}:{sWS+3}], s{sA} offen offset:256 sc1',tag='GR')
    A(f'buffer_load_dwordx4 v[{P.GR+8}:{P.GR+11}], v{P.GRO}, s[{sWS}:{sWS+3}], 0 offen sc1',tag='GR')
    A(f'v_lshl_add_u32 v{P.T3}, v{P.M}, 7, v{P.GRO}')
    A(f'buffer_load_dwordx4 v[{P.GR+12}:{P.GR+15}], v{P.T3}, s[{sWS}:{sWS+3}], 0 offen sc1',tag='GR')

def granule_check(A):
    P=PA
    A(f's_mov_b32 s{sA+8}, 0')
    A.label('L_gr_chk')
    snap=A.snapshot()
    A.wait_vm('GR')
    A(f'''v_cmp_eq_u32 vcc, s{sT}, v{P.GR+2}
v_cmp_eq_u32 s[{sA+2}:{sA+3}], s{sT}, v{P.GR+6}
s_and_b64 vcc, vcc, s[{sA+2}:{sA+3}]
v_cmp_eq_u32 s[{sA+2}:{sA+3}], s{sT}, v{P.GR+10}
s_and_b64 vcc, vcc, s[{sA+2}:{sA+3}]
v_cmp_eq_u32 s[{sA+2}:{sA+3}], s{sT}, v{P.GR+14}
s_and_b64 vcc, vcc, s[{sA+2}:{sA+3}]
s_cmp_eq_u64 vcc, -1
s_cbranch_scc1 L_gr_ok
s_add_u32 s{sA+8}, s{sA+8}, 1
s_cmp_ge_u32 s{sA+8}, 0x4000
s_cbranch_scc1 L_gr_ok''')
    granule_loads(A)
    A('s_waitcnt vmcnt(0)')
    A('s_branch L_gr_chk')
    A.label('L_gr_ok')
    A.restore(snap);
    idx=max(i for i,(t,d) in enumerate(A.vmq) if t=='GR'); A.vmq=A.vmq[idx+1:]
    A(f'''v_cmp_eq_u32 vcc, s{sXCC}, v{P.GR+15}
s_cmp_eq_u64 vcc, -1
s_cselect_b32 s{sFAST}, 1, 0''')

def phaseA_main(A, hooks):
    P=PA
    A.wait_vm('st0'); A.barrier()
    for r in readsA(0): A(r)
    for ks in range(14):
        st=ks>>1
        mf=mfmasA(ks)
        fills=[]
        if ks&1 and st<6:
            for m in mf[:3]: A(m)
            mf=mf[3:]
            A.wait_lg_all()
            A.wait_vm(f'st{st+1}')
            A.barrier()
            fills+=readsA(ks+1)
            if st+3<=6: fills+=dmaA(st+3)
            fills+=hooks.get(st,lambda:[])()
        elif ks<13:
            fills+=readsA(ks+1)
        emit_mixed(A,mf,fills)
        if ('post',ks) in hooks: hooks[('post',ks)]()

def ln_pack(A, accbase, cs, st, tmp, dst):
    for h in range(2):
        A(f'v_pk_mul_f32 v[{tmp+2*h}:{tmp+2*h+1}], v[{cs+2*h}:{cs+2*h+1}], v[{st}:{st+1}] op_sel:[0,0] op_sel_hi:[1,0]')
    for h in range(2):
        A(f'v_pk_fma_f32 v[{tmp+2*h}:{tmp+2*h+1}], v[{accbase+2*h}:{accbase+2*h+1}], v[{st}:{st+1}], v[{tmp+2*h}:{tmp+2*h+1}] op_sel:[0,1,0] op_sel_hi:[1,1,1]')
    for h in range(2):
        A(f'v_cvt_pk_bf16_f32 v{dst+h}, v{tmp+2*h}, v{tmp+2*h+1}')

def phaseA_epilogue(A, store_o):
    P=PA
    F0=P.FR[0]; F1=P.FR[1]
    CS=F0
    CSE=F0+24
    TMP=F0+28
    TMP2=F0+32
    KF=F0+36
    QF=F1
    KP=F1+8
    VA=F1+12
    VP=F1+24
    BIAS=F1+32
    BP0=F1+40
    QS=P.SR
    A(f's_mov_b32 exec_lo, 0x00010001\ns_mov_b32 exec_hi, 0x00010001')
    A(f'ds_write_b128 v{P.CSW0}, v[{accE0}:{accE0+3}]')
    A(f'ds_write_b128 v{P.CSW1}, v[{accE1}:{accE1+3}]')
    A('s_mov_b64 exec, -1')
    A(f'v_lshlrev_b32 v{P.T0}, 2, v{P.G4}')
    A(f'v_sub_u32 v{P.T0}, v{P.M}, v{P.T0}')
    A(f'v_mov_b32 v{P.T3}, {NEG:#x}')
    for r in range(4):
        A(f'''v_subrev_u32 v{P.T1}, {r}, v{P.T0}
v_and_b32 v{P.T2}, 1, v{P.T1}
v_cmp_eq_u32 s[{sA+2}:{sA+3}], 0, v{P.T2}
v_cmp_le_i32 vcc, 0, v{P.T1}
s_and_b64 vcc, vcc, s[{sA+2}:{sA+3}]
v_cndmask_b32 v{BIAS+4+r}, v{P.T3}, 0, vcc
v_cmp_ge_i32 vcc, -2, v{P.T1}
s_and_b64 vcc, vcc, s[{sA+2}:{sA+3}]
v_cndmask_b32 v{BIAS+r}, v{P.T3}, 0, vcc''')
    A(f'''s_or_b32 s{sA}, s{sG}, s{sW}
s_cmp_eq_u32 s{sA}, 0
s_cselect_b64 vcc, -1, 0''')
    for r in range(4): A(f'v_cndmask_b32 v{BP0+r}, v{BIAS+r}, v{P.T3}, vcc')
    A.barrier()
    for j in range(6): A(f'ds_read_b128 v[{CS+4*j}:{CS+4*j+3}], v{P.CSR} offset:{64*j}')
    A(f'ds_read_b128 v[{CSE}:{CSE+3}], v{P.CSW0}')
    A(f's_mov_b32 s{sA}, {np_f32(28**-0.5*1.4426950408889634):#x}')
    A(f's_mov_b32 s{sA+1}, s{sA}')
    for T in range(2):
        A(f'v_pk_mul_f32 v[{QS+2*T}:{QS+2*T+1}], v[{P.GR+4*T}:{P.GR+4*T+1}], s[{sA}:{sA+1}]')
    for T in range(2):
        for t in range(2):
            ln_pack(A, accK(T,t), CS+8+4*t, P.GR+4*T, TMP if t==0 else TMP2, KF+4*T+2*t)
    A(f'ds_write_b128 v{P.KXA}, v[{KF+4}:{KF+7}] offset:1024')
    ln_pack(A, accE0, CSE, P.GR+8, TMP, VP)
    A(f'ds_write_b64 v{P.HALW}, v[{VP}:{VP+1}]')
    for T in range(2):
        for t in range(2):
            d=VP+2+2*((T*2+t)%3)
            ln_pack(A, accV(T,t), CS+16+4*t, P.GR+4*T, TMP if t==0 else TMP2, d)
            A(f'ds_write_b64 v{P.VW0 if t==0 else P.VW1}, v[{d}:{d+1}] offset:{1024*T}')
    A(f'v_cmp_eq_u32 s[{sA+2}:{sA+3}], 3, v{P.G4}')
    for T in range(2):
        for t in range(2):
            ln_pack(A, accQ(T,t), CS+4*t, QS+2*T, TMP if t==0 else TMP2, QF+4*T+2*t)
        for h in range(2):
            A(f'v_cndmask_b32 v{QF+4*T+2+h}, v{QF+4*T+2+h}, 0, s[{sA+2}:{sA+3}]')
    A.barrier()
    A(f'ds_read_b128 v[{KP}:{KP+3}], v{P.KXA}')
    for t in range(2):
        for j in range(3):
            A(f'ds_read_b64_tr_b16 v[{VA+6*t+2*j}:{VA+6*t+2*j+1}], v{P.VR0 if t==0 else P.VR1} offset:{1024*j}')
    S=P.ACC
    for T in (1,0):
        kp = KP if T==0 else KF
        A(f'v_mfma_f32_16x16x32_bf16 v[{S+8*T+4}:{S+8*T+7}], v[{KF+4*T}:{KF+4*T+3}], v[{QF+4*T}:{QF+4*T+3}], 0')
        A(f'v_mfma_f32_16x16x32_bf16 v[{S+8*T}:{S+8*T+3}], v[{kp}:{kp+3}], v[{QF+4*T}:{QF+4*T+3}], 0')
    MX=P.ACC+16
    for T in (1,0):
        bp = BP0 if T==0 else BIAS
        for h in range(2):
            A(f'v_pk_add_f32 v[{S+8*T+4+2*h}:{S+8*T+5+2*h}], v[{S+8*T+4+2*h}:{S+8*T+5+2*h}], v[{BIAS+4+2*h}:{BIAS+5+2*h}]')
        for h in range(2):
            A(f'v_pk_add_f32 v[{S+8*T+2*h}:{S+8*T+1+2*h}], v[{S+8*T+2*h}:{S+8*T+1+2*h}], v[{bp+2*h}:{bp+1+2*h}]')
    for T in (1,0):
        s0=S+8*T; m=MX+2*T
        A(f'v_max3_f32 v{m}, v{s0}, v{s0+1}, v{s0+2}')
        A(f'v_max3_f32 v{m+1}, v{s0+3}, v{s0+4}, v{s0+5}')
        A(f'v_max3_f32 v{m}, v{m}, v{s0+6}, v{s0+7}')
        A(f'v_max_f32 v{m}, v{m}, v{m+1}')
    for swap in ('v_permlane32_swap_b32','v_permlane16_swap_b32'):
        for T in (1,0): A(f'v_mov_b32 v{MX+2*T+1}, v{MX+2*T}')
        for T in (1,0): A(f'{swap} v{MX+2*T}, v{MX+2*T+1}')
        for T in (1,0): A(f'v_max_f32 v{MX+2*T}, v{MX+2*T}, v{MX+2*T+1}')
    for T in (1,0):
        s0=S+8*T; m=MX+2*T
        for h in range(4):
            A(f'v_pk_add_f32 v[{s0+2*h}:{s0+2*h+1}], v[{s0+2*h}:{s0+2*h+1}], v[{m}:{m+1}] op_sel:[0,0] op_sel_hi:[1,0] neg_lo:[0,1] neg_hi:[0,1]')
    for T in (1,0):
        s0=S+8*T
        for j in range(8): A(f'v_exp_f32 v{s0+j}, v{s0+j}')
    PK=P.ACC+24
    SM=P.ACC+20
    for T in (1,0):
        s0=S+8*T
        for h in range(4): A(f'v_cvt_pk_bf16_f32 v{PK+4*T+h}, v{s0+2*h}, v{s0+2*h+1}')
    O=P.ACC+32
    for T in (1,0):
        for t in range(2):
            va=VA+6*t+2*T
            A(f'v_mfma_f32_16x16x32_bf16 v[{O+8*T+4*t}:{O+8*T+4*t+3}], v[{va}:{va+3}], v[{PK+4*T}:{PK+4*T+3}], 0')
    for T in (1,0):
        s0=S+8*T; m=SM+2*T
        A(f'v_pk_add_f32 v[{s0}:{s0+1}], v[{s0}:{s0+1}], v[{s0+2}:{s0+3}]')
        A(f'v_pk_add_f32 v[{s0+4}:{s0+5}], v[{s0+4}:{s0+5}], v[{s0+6}:{s0+7}]')
        A(f'v_pk_add_f32 v[{s0}:{s0+1}], v[{s0}:{s0+1}], v[{s0+4}:{s0+5}]')
        A(f'v_add_f32 v{m}, v{s0}, v{s0+1}')
    for swap in ('v_permlane32_swap_b32','v_permlane16_swap_b32'):
        for T in (1,0): A(f'v_mov_b32 v{SM+2*T+1}, v{SM+2*T}')
        for T in (1,0): A(f'{swap} v{SM+2*T}, v{SM+2*T+1}')
        for T in (1,0): A(f'v_add_f32 v{SM+2*T}, v{SM+2*T}, v{SM+2*T+1}')
    for T in (1,0): A(f'v_rcp_f32 v{SM+2*T}, v{SM+2*T}')
    OP=P.ACC+48
    for T in (1,0):
        for t in range(2):
            for h in range(2):
                o=O+8*T+4*t+2*h
                A(f'v_pk_mul_f32 v[{o}:{o+1}], v[{o}:{o+1}], v[{SM+2*T}:{SM+2*T+1}] op_sel:[0,0] op_sel_hi:[1,0]')
        for t in range(2):
            for h in range(2):
                o=O+8*T+4*t+2*h
                A(f'v_cvt_pk_bf16_f32 v{OP+4*T+2*t+h}, v{o}, v{o+1}')
        for h in range(2):
            A(f'v_cndmask_b32 v{OP+4*T+2+h}, v{OP+4*T+2+h}, 0, s[{sA+2}:{sA+3}]')
        store_o(T, OP+4*T)

def np_f32(x):
    import struct
    return struct.unpack('<I',struct.pack('<f',x))[0]


class PB:
    M=17; G4=18; T0=19; T1=20; T2=21; T3=22
    AT=1
    ATH=5
    LD0=9; LD1=10
    LE0=11; LE1=12
    WD=13
    RES=14
    HST=15
    SCW=16; SCR=23
    STO=24
    ACC=32
    WF=(64,80)
    BF=96
    RX=160
    ST=168
    TMP=176

sRH=57; sJ=58; sKH=59; sMH=60; sMT=61

def setupBD(A, ldsbase_kh_stride, ldsbase):
    P=PB
    A(f"""v_and_b32 v{P.M}, 15, v0
v_lshrrev_b32 v{P.G4}, 4, v0
s_cmp_ge_u32 s{sC}, 7
s_cselect_b32 s{sRH}, 1, 0
s_mul_i32 s{sJ}, s{sRH}, 7
s_sub_u32 s{sJ}, s{sC}, s{sJ}
s_lshr_b32 s{sKH}, s{sW}, 1
s_and_b32 s{sMH}, s{sW}, 1
s_lshl_b32 s{sMT}, s{sRH}, 2
s_lshl_b32 s{sA}, s{sMH}, 1
s_add_u32 s{sMT}, s{sMT}, s{sA}
s_add_u32 s{sMT}, s{sMT}, s{sKH}""")
    A(f"""v_lshrrev_b32 v{P.T0}, 2, v0
v_lshlrev_b32 v{P.T0}, 7, v{P.T0}
v_and_b32 v{P.T1}, 3, v0
v_lshl_add_u32 v{P.T0}, v{P.T1}, 3, v{P.T0}
s_mul_i32 s{sA}, s{sKH}, {ldsbase_kh_stride}
s_add_u32 s{sA}, s{sA}, {ldsbase}
v_add_u32 v{P.T0}, s{sA}, v{P.T0}
v_bfe_u32 v{P.T1}, v0, 3, 2""")
    for t in range(4):
        A(f"""v_xor_b32 v{P.T2}, {t}, v{P.T1}
v_lshl_add_u32 v{P.AT+t}, v{P.T2}, 5, v{P.T0}""")
    A(f"""v_lshrrev_b32 v{P.T0}, 3, v0
v_mul_u32_u24 v{P.T0}, 896, v{P.T0}
v_lshlrev_b32 v{P.T1}, 1, v{P.G4}
v_and_b32 v{P.T2}, 7, v0
v_xor_b32 v{P.T1}, v{P.T1}, v{P.T2}
v_lshl_add_u32 v{P.T0}, v{P.T1}, 4, v{P.T0}
s_lshl_b32 s{sA}, s{sJ}, 7
v_add_u32 v{P.WD}, s{sA}, v{P.T0}""")
    A(f"""s_lshl_b32 s{sA}, s{sMT}, 4
s_add_u32 s{sA}, s{sA}, s{sR0}
v_add_u32 v{P.T0}, s{sA}, v{P.M}
v_mul_u32_u24 v{P.T0}, 896, v{P.T0}
v_lshl_add_u32 v{P.T0}, v{P.G4}, 3, v{P.T0}
s_lshl_b32 s{sA}, s{sJ}, 7
v_add_u32 v{P.RES}, s{sA}, v{P.T0}""")
    A(f"""s_mul_i32 s{sA}, s{sG}, 0x1C000
s_mul_i32 s{sA+1}, s{sMT}, 14336
s_add_u32 s{sA}, s{sA}, s{sA+1}
s_lshl_b32 s{sA+1}, s{sJ}, 11
s_add_u32 s{sA}, s{sA}, s{sA+1}
s_add_u32 s{sA}, s{sA}, {WS_H}
v_lshlrev_b32 v{P.T3}, 4, v0
v_add_u32 v{P.HST}, s{sA}, v{P.T3}""")

def reduce_addr(A, scr):
    P=PB
    A(f"""v_lshlrev_b32 v{P.T3}, 4, v0
s_lshl_b32 s{sA}, s{sW}, 12
s_add_u32 s{sA}, s{sA}, {scr}
v_add_u32 v{P.SCW}, s{sA}, v{P.T3}
s_xor_b32 s{sA}, s{sW}, 2
s_lshl_b32 s{sA}, s{sA}, 12
s_add_u32 s{sA}, s{sA}, {scr}
v_add_u32 v{P.SCR}, s{sA}, v{P.T3}""")

def accB(T,t): return PB.ACC+(T*4+t)*4

def reduce2(A):
    P=PB
    A.wait_lg_all(); A.barrier()
    for t in range(4): A(f'ds_write_b128 v{P.SCW}, v[{accB(1,t)}:{accB(1,t)+3}] offset:{1024*t}')
    A.barrier()
    R=P.TMP
    for t in range(4): A(f'ds_read_b128 v[{R+4*t}:{R+4*t+3}], v{P.SCR} offset:{1024*t}')
    for t in range(4):
        for h in range(2):
            a=accB(0,t)+2*h
            A(f'v_pk_add_f32 v[{a}:{a+1}], v[{a}:{a+1}], v[{R+4*t+2*h}:{R+4*t+2*h+1}]')

def setupB(A):
    P=PB
    setupBD(A, 8*28*128, WOB)
    A(f"""s_lshl_b32 s{sA}, s{sG}, 17
s_lshl_b32 s{sA+1}, s{sKH}, 13
s_add_u32 s{sA}, s{sA}, s{sA+1}
s_add_u32 s{sA}, s{sA}, {WS_O}
s_lshl_b32 s{sA+1}, s{sMT}, 14
s_add_u32 s{sA+1}, s{sA+1}, s{sA}
v_lshlrev_b32 v{P.T3}, 4, v0
v_add_u32 v{P.LD0}, s{sA+1}, v{P.T3}
s_xor_b32 s{sA+2}, s{sMT}, 1
s_lshl_b32 s{sA+2}, s{sA+2}, 14
s_add_u32 s{sA+2}, s{sA+2}, s{sA}
v_add_u32 v{P.LD1}, s{sA+2}, v{P.T3}""")
    A(f"""s_lshl_b32 s{sA}, s{sG}, 13
s_lshl_b32 s{sA+1}, s{sJ}, 10
s_add_u32 s{sA}, s{sA}, s{sA+1}
s_lshl_b32 s{sA+1}, s{sMT}, 7
s_add_u32 s{sA}, s{sA}, s{sA+1}
s_add_u32 s{sA}, s{sA}, {WS_ST2}
v_lshlrev_b32 v{P.T0}, 3, v{P.M}
v_add_u32 v{P.T0}, s{sA}, v{P.T0}
v_mov_b32 v{P.T1}, 0x80000000
v_cmp_gt_u32 vcc, 16, v0
v_cndmask_b32 v{P.STO}, v{P.T1}, v{P.T0}, vcc""")
    reduce_addr(A, WOB)

def dmaWo():
    P=PB; L=[]
    for u in range(14):
        L.append((f's_add_u32 s{sA+8}, s{sA+10}, {4*u*7168}',None))
        L.append((f's_add_u32 m0, s{sA+11}, {WOB+4*u*1024}',None))
        L.append((f'buffer_load_dwordx4 v{P.WD}, s[{sWO}:{sWO+3}], s{sA+8} offen lds','WO'))
    pre=[(f's_mul_i32 s{sA+10}, s{sW}, 7168',None),(f's_lshl_b32 s{sA+11}, s{sW}, 10',None)]
    return pre+L

def zero_wo_tail(A):
    P=PB
    A(f"""v_mov_b32 v{P.TMP}, 0
v_mov_b32 v{P.TMP+1}, 0
v_lshlrev_b32 v{P.T0}, 3, v0
v_add_u32 v{P.T0}, {WOB+448*128}, v{P.T0}
ds_write_b64 v{P.T0}, v[{P.TMP}:{P.TMP+1}]""")

def loadsB_res(A):
    P=PB
    for t in range(4):
        A(f'buffer_load_dwordx2 v[{P.RX+2*t}:{P.RX+2*t+1}], v{P.RES}, s[{sX}:{sX+3}], 0 offen offset:{32*t}',tag='RX')

def loadsB_o(A):
    P=PB
    A(f's_movk_i32 s{sA}, 4096')
    for i in range(8):
        for T in range(2):
            d=P.BF+(i*2+T)*4
            so = '0' if i<4 else f's{sA}'
            A(f'buffer_load_dwordx4 v[{d}:{d+3}], v{P.LD0 if T==0 else P.LD1}, s[{sWS}:{sWS+3}], {so} offen offset:{(i&3)*1024} sc1',tag='OL')

def wreadsB(i):
    P=PB; F=P.WF[i&1]; L=[]
    for t in range(4):
        at=P.AT+(t^2 if (i&1) else t)
        for hh in range(2):
            L.append(f'ds_read_b64_tr_b16 v[{F+4*t+2*hh}:{F+4*t+2*hh+1}], v{at} offset:{(28*i+16*hh)*128}')
    return L

def mfmasBD(i, bf):
    P=PB; F=P.WF[i&1]; L=[]
    for t in range(4):
        for T in range(2):
            d=accB(T,t); b=bf(T)
            L.append(f'v_mfma_f32_16x16x32_bf16 v[{d}:{d+3}], v[{F+4*t}:{F+4*t+3}], v[{b}:{b+3}], v[{d}:{d+3}]')
    return L

def mainB(A):
    P=PB
    for r in range(32): A(f'v_mov_b32 v{P.ACC+r}, 0')
    for r in wreadsB(0): A(r)
    for i in range(8):
        emit_mixed(A, mfmasBD(i, lambda T: P.BF+(i*2+T)*4), wreadsB(i+1) if i<7 else [])

def unpack_bf16(A, src, dst):
    A(f'v_lshlrev_b32 v{dst}, 16, v{src}')
    A(f'v_and_b32 v{dst+1}, 0xffff0000, v{src}')

def cross_sum(A, regs, tmp):
    for swap in ('v_permlane32_swap_b32','v_permlane16_swap_b32'):
        for k,r in enumerate(regs): A(f'v_mov_b32 v{tmp+k}, v{r}')
        for k,r in enumerate(regs): A(f'{swap} v{r}, v{tmp+k}')
        for k,r in enumerate(regs): A(f'v_add_f32 v{r}, v{r}, v{tmp+k}')

def epilogueB(A, st16, st8):
    P=PB; R=P.TMP+16; S=P.ST
    for t in range(4):
        for h in range(2):
            unpack_bf16(A, P.RX+2*t+h, R+2*h)
        for h in range(2):
            a=accB(0,t)+2*h
            A(f'v_pk_add_f32 v[{a}:{a+1}], v[{a}:{a+1}], v[{R+2*h}:{R+2*h+1}]')
    HP=P.TMP
    for t in range(4):
        for h in range(2):
            a=accB(0,t)+2*h
            A(f'v_cvt_pk_bf16_f32 v{HP+2*t+h}, v{a}, v{a+1}')
    for q in range(2): st16(HP+4*q, 1024*q)
    a0=accB(0,0)
    A(f'v_pk_mul_f32 v[{S+2}:{S+3}], v[{a0}:{a0+1}], v[{a0}:{a0+1}]')
    A(f'v_pk_add_f32 v[{S}:{S+1}], v[{a0}:{a0+1}], v[{a0+2}:{a0+3}]')
    A(f'v_pk_fma_f32 v[{S+2}:{S+3}], v[{a0+2}:{a0+3}], v[{a0+2}:{a0+3}], v[{S+2}:{S+3}]')
    for k in range(2,8):
        a=a0+2*k
        A(f'v_pk_add_f32 v[{S}:{S+1}], v[{S}:{S+1}], v[{a}:{a+1}]')
        A(f'v_pk_fma_f32 v[{S+2}:{S+3}], v[{a}:{a+1}], v[{a}:{a+1}], v[{S+2}:{S+3}]')
    A(f'v_add_f32 v{S}, v{S}, v{S+1}')
    A(f'v_add_f32 v{S+1}, v{S+2}, v{S+3}')
    cross_sum(A,(S,S+1),S+2)
    st8(S)

RING=8
def setupD(A):
    P=PB
    setupBD(A, 81920, 0)
    for t in range(4): A(f'v_add_u32 v{P.ATH+t}, 0x10000, v{P.AT+t}')
    A(f"""s_mul_i32 s{sA}, s{sG}, 0x70000
s_mul_i32 s{sA+1}, s{sKH}, 28672
s_add_u32 s{sA}, s{sA}, s{sA+1}
s_add_u32 s{sA}, s{sA}, {WS_H1}
s_mul_i32 s{sA+1}, s{sMT}, 57344
s_add_u32 s{sA+1}, s{sA+1}, s{sA}
s_xor_b32 s{sA+2}, s{sMT}, 1
s_mul_i32 s{sA+2}, s{sA+2}, 57344
s_add_u32 s{sA+2}, s{sA+2}, s{sA}
v_lshlrev_b32 v{P.T3}, 4, v0
v_add_u32 v{P.LD0}, s{sA+1}, v{P.T3}
v_add_u32 v{P.LD1}, s{sA+2}, v{P.T3}
v_lshlrev_b32 v{P.T3}, 3, v0
v_add_u32 v{P.T3}, 6144, v{P.T3}
v_add_u32 v{P.LE0}, s{sA+1}, v{P.T3}
v_add_u32 v{P.LE1}, s{sA+2}, v{P.T3}""")
    A(f"""s_mul_i32 s{sA}, s{sW}, 7168
v_add_u32 v{P.WD}, s{sA}, v{P.WD}""")
    A(f"""s_lshl_b32 s{sA}, s{sG}, 13
s_lshl_b32 s{sA+1}, s{sMT}, 7
s_add_u32 s{sA}, s{sA}, s{sA+1}
s_add_u32 s{sA}, s{sA}, {WS_ST2}
v_lshlrev_b32 v{P.T0}, 3, v{P.M}
v_lshl_add_u32 v{P.T0}, v{P.G4}, 10, v{P.T0}
v_add_u32 v{P.STO}, s{sA}, v{P.T0}""")
    A(f"""s_lshl_b32 s62, s{sW}, 10
s_lshr_b32 s63, s{sW}, 1
s_add_u32 s63, s63, 1
s_mul_i32 s63, s63, {96*896}""")
    reduce_addr(A, 0)

def dmaW2(kh,kap,slot_addr,tag):
    P=PB; Pp=4*kh+kap//7; sg=kap%7; L=[]
    if sg<3: L.append((f's_mov_b32 s{sA+8}, {(224*Pp+32*sg)*896}',None))
    elif sg<6: L.append((f's_mov_b32 s{sA+8}, {(224*Pp+112+32*(sg-3))*896}',None))
    else: L.append((f's_add_u32 s{sA+8}, s63, {224*Pp*896}',None))
    L.append((f's_add_u32 m0, s62, {slot_addr}',None))
    L.append((f'buffer_load_dwordx4 v{P.WD}, s[{sW2}:{sW2+3}], s{sA+8} offen lds',tag))
    return L

def w2slot(kh,kap): return kh*81920+(kap%20)*4096

def loadsD_h1(kap):
    P=PB; L=[]; q=kap//7; sg=kap%7
    for T in range(2):
        d=P.BF+((kap%RING)*2+T)*4
        if sg<6:
            so=q*7168+(sg>>2)*4096
            L.append((f's_mov_b32 s{sA+9}, {so}',None)) if T==0 else None
            L.append((f'buffer_load_dwordx4 v[{d}:{d+3}], v{P.LD0 if T==0 else P.LD1}, s[{sWS}:{sWS+3}], s{sA+9} offen offset:{(sg&3)*1024} sc1',f'H1_{kap}'))
        else:
            L.append((f's_mov_b32 s{sA+9}, {q*7168}',None)) if T==0 else None
            for hh in range(2):
                L.append((f'buffer_load_dwordx2 v[{d+2*hh}:{d+2*hh+1}], v{P.LE0 if T==0 else P.LE1}, s[{sWS}:{sWS+3}], s{sA+9} offen offset:{512*hh} sc1',f'H1_{kap}'))
    return L

def wreadsD(kap):
    P=PB; F=P.WF[kap&1]; L=[]; sl=kap%20
    for t in range(4):
        at=(P.AT if sl<16 else P.ATH)+t
        for hh in range(2):
            L.append(f'ds_read_b64_tr_b16 v[{F+4*t+2*hh}:{F+4*t+2*hh+1}], v{at} offset:{(sl%16)*4096+hh*2048}')
    return L

def loadsD_res(A):
    P=PB
    for q in range(2):
        A(f'buffer_load_dwordx4 v[{P.RX+4*q}:{P.RX+4*q+3}], v{P.HST}, s[{sWS}:{sWS+3}], 0 offen offset:{1024*q} sc1',tag='RX')
    A(f's_movk_i32 s{sA}, 4096')
    A(f'buffer_load_dwordx2 v[{P.ST}:{P.ST+1}], v{P.STO}, s[{sWS}:{sWS+3}], 0 offen sc1',tag='RX')
    A(f'buffer_load_dwordx2 v[{P.ST+2}:{P.ST+3}], v{P.STO}, s[{sWS}:{sWS+3}], s{sA} offen sc1',tag='RX')

def finish_stats(A, S, G4, tmp, want):
    A(f'v_cmp_eq_u32 vcc, 3, v{G4}')
    A(f'v_cndmask_b32 v{S+2}, v{S+2}, 0, vcc')
    A(f'v_cndmask_b32 v{S+3}, v{S+3}, 0, vcc')
    A(f'v_pk_add_f32 v[{S}:{S+1}], v[{S}:{S+1}], v[{S+2}:{S+3}]')
    cross_sum(A,(S,S+1),tmp)
    A(f"""v_mul_f32 v{S}, {-1.0/448.0!r}, v{S}
v_mul_f32 v{S+1}, {1.0/448.0!r}, v{S+1}
v_fma_f32 v{S+1}, -v{S}, v{S}, v{S+1}
v_max_f32 v{S+1}, 0, v{S+1}
v_add_f32 v{S+1}, 0x3727c5ac, v{S+1}
v_rsq_f32 v{S+1}, v{S+1}""")

def mainD(A):
    P=PB
    for r in range(32): A(f'v_mov_b32 v{P.ACC+r}, 0')
    for r in wreadsD(0): A(r)
    for kap in range(28):
        mf=mfmasBD(kap, lambda T: P.BF+((kap%RING)*2+T)*4)
        fills=[]
        if kap==8:
            for m in mf[:2]: A(m)
            mf=mf[2:]
            A.wait_lg('w7'); A.barrier()
            for kh in range(2):
                for k2 in range(20,28): fills+=dmaW2(kh,k2,w2slot(kh,k2),'W2L')
        if kap==19:
            for m in mf[:2]: A(m)
            mf=mf[2:]
            A.wait_vm('W2L'); A.barrier()
        rd=wreadsD(kap+1) if kap<27 else []
        if kap==6: rd=[(r,'w7') for r in rd]
        fills=rd+fills
        emit_mixed(A, mf, fills)
        if kap+RING<28:
            for t,tag in loadsD_h1(kap+RING): A(t,tag=tag)

def epilogueD(A):
    P=PB; R=P.TMP+16; S=P.ST
    OP=P.TMP
    for t in range(4):
        for h in range(2): unpack_bf16(A, P.RX+2*t+h, R+2*h)
        for h in range(2):
            a=accB(0,t)+2*h
            A(f'v_pk_fma_f32 v[{a}:{a+1}], v[{a}:{a+1}], v[{S}:{S+1}], v[{R+2*h}:{R+2*h+1}] op_sel:[0,1,0] op_sel_hi:[1,1,1]')
        for h in range(2):
            a=accB(0,t)+2*h
            A(f'v_cvt_pk_bf16_f32 v{OP+2*t+h}, v{a}, v{a+1}')
        A(f'buffer_store_dwordx2 v[{OP+2*t}:{OP+2*t+1}], v{P.RES}, s[{sOUT}:{sOUT+3}], 0 offen offset:{32*t}',tag='OUT')

class PC:
    M=17; G4=18; T0=19; T1=20; T2=21; T3=22
    WA=1; WB=2
    TR0=3; TR1=4
    HL=5
    STO=6
    CSA=7; CSB=8; CSA1=9; CSB1=10; CSW=11; CSW2=12; CSR=13
    H16=14; H8=15
    ACC=32
    WF=(88,116)
    HF=144
    ST=24
CS1=MISC

def accC(T,t): return PC.ACC+(T*7+t)*4

def setupC(A):
    P=PC
    A(f"""v_and_b32 v{P.M}, 15, v0
v_lshrrev_b32 v{P.G4}, 4, v0""")
    for reg,add in ((P.WA,0),(P.WB,64)):
        A(f"""v_add_u32 v{P.T0}, {add}, v0
v_mul_u32_u24 v{P.T1}, 4682, v{P.T0}
v_lshrrev_b32 v{P.T1}, 16, v{P.T1}
v_mul_u32_u24 v{P.T2}, 14, v{P.T1}
v_sub_u32 v{P.T2}, v{P.T0}, v{P.T2}
v_mul_u32_u24 v{P.T1}, 3584, v{P.T1}
v_lshl_add_u32 v{reg}, v{P.T2}, 4, v{P.T1}
s_mul_i32 s{sA}, s{sW}, {8*3584}
s_mul_i32 s{sA+1}, s{sC}, 224
s_add_u32 s{sA}, s{sA}, s{sA+1}
v_add_u32 v{reg}, s{sA}, v{reg}""")
    A(f"""v_lshrrev_b32 v{P.T0}, 2, v0
v_mul_u32_u24 v{P.T0}, 224, v{P.T0}
v_and_b32 v{P.T1}, 3, v0
v_lshl_add_u32 v{P.TR0}, v{P.T1}, 3, v{P.T0}
v_add_u32 v{P.TR1}, {7*7168}, v{P.TR0}
s_lshl_b32 s{sA}, s{sW}, 6
v_add_u32 v{P.CSA}, s{sA}, v{P.TR0}
s_add_u32 s{sA+1}, s{sA}, 32
s_min_u32 s{sA+1}, s{sA+1}, 192
v_add_u32 v{P.CSB}, s{sA+1}, v{P.TR0}
v_add_u32 v{P.CSA1}, {7*7168}, v{P.CSA}
v_add_u32 v{P.CSB1}, {7*7168}, v{P.CSB}
v_lshlrev_b32 v{P.T0}, 4, v{P.G4}
v_add_u32 v{P.CSR}, {CS1}, v{P.T0}
s_lshl_b32 s{sA}, s{sA}, 1
v_add_u32 v{P.CSW}, s{sA}, v{P.CSR}
s_lshl_b32 s{sA+1}, s{sA+1}, 1
v_add_u32 v{P.CSW2}, s{sA+1}, v{P.CSR}""")
    A(f"""s_mul_i32 s{sA}, s{sG}, 0x1C000
s_mul_i32 s{sA+1}, s{sW}, 28672
s_add_u32 s{sA}, s{sA}, s{sA+1}
s_add_u32 s{sA}, s{sA}, {WS_H}
v_lshlrev_b32 v{P.T3}, 4, v0
v_add_u32 v{P.HL}, s{sA}, v{P.T3}""")
    A(f"""s_lshl_b32 s{sA}, s{sG}, 13
s_lshl_b32 s{sA+1}, s{sW}, 8
s_add_u32 s{sA}, s{sA}, s{sA+1}
s_add_u32 s{sA}, s{sA}, {WS_ST2}
v_lshlrev_b32 v{P.T0}, 3, v{P.M}
v_lshl_add_u32 v{P.T0}, v{P.G4}, 10, v{P.T0}
v_add_u32 v{P.STO}, s{sA}, v{P.T0}""")
    A(f"""s_mul_i32 s{sA}, s{sG}, 0x70000
s_mul_i32 s{sA+1}, s{sW}, {2*57344}
s_add_u32 s{sA}, s{sA}, s{sA+1}
s_lshr_b32 s{sA+1}, s{sC}, 1
s_mul_i32 s{sA+1}, s{sA+1}, 7168
s_add_u32 s{sA}, s{sA}, s{sA+1}
s_add_u32 s{sA}, s{sA}, {WS_H1}
s_and_b32 s{sA+1}, s{sC}, 1
s_mul_i32 s{sA+2}, s{sA+1}, 3072
s_add_u32 s{sA+2}, s{sA+2}, s{sA}
v_add_u32 v{P.H16}, s{sA+2}, v{P.T3}
s_lshl_b32 s{sA+1}, s{sA+1}, 9
s_add_u32 s{sA+1}, s{sA+1}, s{sA}
s_add_u32 s{sA+1}, s{sA+1}, 6144
v_lshlrev_b32 v{P.T3}, 3, v0
v_add_u32 v{P.H8}, s{sA+1}, v{P.T3}""")
    A(f's_mul_i32 s64, s{sW}, 1792')
    A(f's_mov_b32 s66, -1\ns_mov_b32 s67, 0xffff')

def dmaW1(blocks):
    P=PC; L=[]
    for s_ in blocks:
        L.append((f's_mov_b32 s{sA+8}, {s_*114688}',None))
        L.append((f's_add_u32 m0, s64, {s_*7168}',None))
        L.append((f'buffer_load_dwordx4 v{P.WA}, s[{sW1}:{sW1+3}], s{sA+8} offen lds','W1'))
    L.append(('s_mov_b64 exec, s[66:67]',None))
    for s_ in blocks:
        L.append((f's_mov_b32 s{sA+8}, {s_*114688}',None))
        L.append((f's_add_u32 m0, s64, {s_*7168+1024}',None))
        L.append((f'buffer_load_dwordx4 v{P.WB}, s[{sW1}:{sW1+3}], s{sA+8} offen lds','W1'))
    L.append(('s_mov_b64 exec, -1',None))
    return L

def colsumC(A):
    P=PC
    ONE=P.ACC+8; F=P.WF[0]; D0=P.ACC; D1=P.ACC+4
    for r in range(4): A(f'v_mov_b32 v{ONE+r}, 0x3f803f80')
    for r in range(8): A(f'v_mov_b32 v{D0+r}, 0')
    def rd(s_):
        b=F+8*(s_%3); L=[]
        for k,(lo,hi) in enumerate(((P.CSA,P.CSA1),(P.CSB,P.CSB1))):
            ad = lo if s_<7 else hi
            for hh in range(2):
                L.append(f'ds_read_b64_tr_b16 v[{b+4*k+2*hh}:{b+4*k+2*hh+1}], v{ad} offset:{(32*(s_%7)+16*hh)*224}')
        return L
    for r in rd(0)+rd(1): A(r)
    for s_ in range(14):
        b=F+8*(s_%3)
        A(f'v_mfma_f32_16x16x32_bf16 v[{D0}:{D0+3}], v[{b}:{b+3}], v[{ONE}:{ONE+3}], v[{D0}:{D0+3}]')
        nx=rd(s_+2) if s_+2<14 else []
        for r in nx[:2]: A(r)
        A(f'v_mfma_f32_16x16x32_bf16 v[{D1}:{D1+3}], v[{b+4}:{b+7}], v[{ONE}:{ONE+3}], v[{D1}:{D1+3}]')
        for r in nx[2:]: A(r)
    A('s_mov_b32 exec_lo, 0x00010001\ns_mov_b32 exec_hi, 0x00010001')
    A(f'ds_write_b128 v{P.CSW}, v[{D0}:{D0+3}]')
    A(f'ds_write_b128 v{P.CSW2}, v[{D1}:{D1+3}]')
    A('s_mov_b64 exec, -1')

def loadsC(A):
    P=PC
    A(f's_movk_i32 s{sA}, 4096')
    for T in range(2):
        A(f'buffer_load_dwordx2 v[{P.ST+4*T}:{P.ST+4*T+1}], v{P.STO}, s[{sWS}:{sWS+3}], 0 offen offset:{128*T} sc1',tag='ST')
        A(f'buffer_load_dwordx2 v[{P.ST+4*T+2}:{P.ST+4*T+3}], v{P.STO}, s[{sWS}:{sWS+3}], s{sA} offen offset:{128*T} sc1',tag='ST')
    for s_ in range(14):
        for T in range(2):
            so=T*14336+(s_>>2)*4096
            d=P.HF+(s_*2+T)*4
            if so==0: sor='0'
            else:
                A(f's_mov_b32 s{sA+9}, {so}'); sor=f's{sA+9}'
            A(f'buffer_load_dwordx4 v[{d}:{d+3}], v{P.HL}, s[{sWS}:{sWS+3}], {sor} offen offset:{(s_&3)*1024} sc1',tag=f'HL')

def wreadsC(s_):
    P=PC; F=P.WF[s_&1]; L=[]
    ad=P.TR0 if s_<7 else P.TR1
    for t in range(7):
        for hh in range(2):
            L.append(f'ds_read_b64_tr_b16 v[{F+4*t+2*hh}:{F+4*t+2*hh+1}], v{ad} offset:{(32*(s_%7)+16*hh)*224+32*t}')
    return L

def mainC(A):
    P=PC
    for r in range(56): A(f'v_mov_b32 v{P.ACC+r}, 0')
    for r in wreadsC(0): A(r)
    for s_ in range(14):
        F=P.WF[s_&1]; mf=[]
        for t in range(7):
            for T in range(2):
                d=accC(T,t); b=P.HF+(s_*2+T)*4
                mf.append(f'v_mfma_f32_16x16x32_bf16 v[{d}:{d+3}], v[{F+4*t}:{F+4*t+3}], v[{b}:{b+3}], v[{d}:{d+3}]')
        emit_mixed(A, mf, wreadsC(s_+1) if s_<13 else [])

def epilogueC(A, st16, st8):
    P=PC
    CS=P.WF[0]
    for t in range(7): A(f'ds_read_b128 v[{CS+4*t}:{CS+4*t+3}], v{P.CSR} offset:{64*t}')
    PK=P.WF[1]
    for T in range(2):
        st=P.ST+4*T
        for t in range(7):
            for h in range(2):
                a=accC(T,t)+2*h
                A(f'v_pk_fma_f32 v[{a}:{a+1}], v[{CS+4*t+2*h}:{CS+4*t+2*h+1}], v[{st}:{st+1}], v[{a}:{a+1}] op_sel:[0,0,0] op_sel_hi:[1,0,1]')
            for h in range(2):
                a=accC(T,t)+2*h; d=PK+14*T+2*t+h
                A(f'v_cvt_pk_bf16_f32 v{d}, v{a}, v{a+1}')
            for h in range(2):
                d=PK+14*T+2*t+h
                A(f'v_pk_max_i16 v{d}, v{d}, 0')
            if t in (1,3,5): st16(T, PK+14*T+2*(t-1), (t>>1)*1024)
            if t==6: st8(T, PK+14*T+12)


def flag_addr(A, vreg, tmp_s, off):
    A(f"""s_lshl_b32 s{tmp_s}, s{sG}, 12
s_add_u32 s{tmp_s}, s{tmp_s}, {WS_SYNC+off}
v_lshl_add_u32 v{vreg}, v0, 2, s{tmp_s}""")

def signal(A, off, vt, sc1, tag='FLG'):
    A(f"""s_lshl_b32 s{sA}, s{sG}, 12
s_lshl_b32 s{sA+1}, s{sC}, 4
s_add_u32 s{sA}, s{sA}, s{sA+1}
s_lshl_b32 s{sA+1}, s{sW}, 2
s_add_u32 s{sA}, s{sA}, s{sA+1}
s_add_u32 s{sA}, s{sA}, {WS_SYNC+off}
v_mov_b32 v{vt}, s{sA}
v_mov_b32 v{vt+1}, s{sT}
v_mov_b32 v{vt+2}, 0x80000000
v_cmp_eq_u32 vcc, 0, v0
v_cndmask_b32 v{vt}, v{vt+2}, v{vt}, vcc""")
    A(f'buffer_store_dword v{vt+1}, v{vt}, s[{sWS}:{sWS+3}], 0 offen'+(' sc1' if sc1 else ''),tag=tag)

def poll(A, off, vt, nwords, name):
    flag_addr(A, vt, sA, off)
    A(f's_mov_b32 s{sA+2}, 0')
    if nwords<64:
        A(f's_mov_b32 s{sA+4}, {(1<<min(nwords,32))-1:#x}' if nwords<32 else f's_mov_b32 s{sA+4}, -1')
        A(f's_mov_b32 s{sA+5}, {((1<<(nwords-32))-1) if nwords>32 else 0:#x}')
    else:
        A(f's_mov_b64 s[{sA+4}:{sA+5}], -1')
    A.label(f'L_poll_{name}')
    A(f'buffer_load_dword v{vt+1}, v{vt}, s[{sWS}:{sWS+3}], 0 offen sc1',tag='POLL')
    A('s_waitcnt vmcnt(0)')
    A(f"""v_cmp_eq_u32 vcc, s{sT}, v{vt+1}
s_and_b64 vcc, vcc, s[{sA+4}:{sA+5}]
s_cmp_eq_u64 vcc, s[{sA+4}:{sA+5}]
s_cbranch_scc1 L_pollok_{name}
s_add_u32 s{sA+2}, s{sA+2}, 1
s_cmp_lt_u32 s{sA+2}, 0x8000
s_cbranch_scc1 L_poll_{name}""")
    A.label(f'L_pollok_{name}')

def epoch_update(A, vt):
    A(f"""s_lshl_b32 s{sA}, s{sG}, 12
s_or_b32 s{sA+1}, s{sC}, s{sW}
v_mov_b32 v{vt}, s{sA}
v_mov_b32 v{vt+1}, s{sT}
v_mov_b32 v{vt+2}, 0x80000000
s_cmp_eq_u32 s{sA+1}, 0
s_cselect_b64 s[{sA+2}:{sA+3}], 1, 0
v_cndmask_b32 v{vt}, v{vt+2}, v{vt}, s[{sA+2}:{sA+3}]""")
    A(f'buffer_store_dword v{vt+1}, v{vt}, s[{sWS}:{sWS+3}], 0 offen sc1',tag='EUP')

def finish(A, name):
    A.label('L_end'); A('s_endpgm')
    A.pad_hazards()
    return A.text().replace('L_',f'L{name}_')

def build_kA():
    A=Asm()
    prologue(A)
    phaseA_setup(A)
    for st in range(3):
        for t,tag in dmaA(st): A(t,tag=tag)
    phaseA_setup2(A)
    phaseA_stats(A)
    signal(A,512,PA.SR+8,True)
    hooks={('post',8):lambda: granule_loads(A)}
    phaseA_main(A,hooks)
    granule_check(A)
    def store_o(T,reg):
        A(f's_mov_b32 s56, {T*16384}')
        A(f'buffer_store_dwordx4 v[{reg}:{reg+3}], v{PA.OST}, s[{sWS}:{sWS+3}], s56 offen',tag='OST')
    phaseA_epilogue(A,store_o)
    poll(A,512,PA.SR+8,64,'f0')
    epoch_update(A,PA.SR+8)
    A.wait_vm_all()
    return finish(A,'a')

def build_kB():
    A=Asm(); P=PB
    prologue(A)
    A(f's_cmp_ge_u32 s{sC}, 14\ns_cbranch_scc1 L_end')
    setupB(A)
    A('s_waitcnt lgkmcnt(0)')
    for t,tag in dmaWo(): A(t,tag=tag)
    loadsB_res(A); loadsB_o(A)
    zero_wo_tail(A)
    A.wait_vm('WO'); A.barrier()
    mainB(A); reduce2(A)
    def st16(reg,off): A(f'buffer_store_dwordx4 v[{reg}:{reg+3}], v{P.HST}, s[{sWS}:{sWS+3}], 0 offen offset:{off}',tag='HS')
    def st8(reg): A(f'buffer_store_dwordx2 v[{reg}:{reg+1}], v{P.STO}, s[{sWS}:{sWS+3}], 0 offen',tag='HS')
    epilogueB(A,st16,st8)
    A.wait_vm_all()
    return finish(A,'b')

def build_kC():
    A=Asm(); P=PC
    prologue(A)
    setupC(A)
    A('s_waitcnt lgkmcnt(0)')
    for t,tag in dmaW1(range(14)): A(t,tag=tag)
    loadsC(A)
    A.wait_vm('W1'); A.barrier()
    colsumC(A)
    A.barrier()
    for T in range(2): finish_stats(A,P.ST+4*T,P.G4,P.T0,None)
    mainC(A)
    def st16(T,reg,off):
        A(f's_mov_b32 s{sA+9}, {T*57344}')
        A(f'buffer_store_dwordx4 v[{reg}:{reg+3}], v{P.H16}, s[{sWS}:{sWS+3}], s{sA+9} offen offset:{off}',tag='H1S')
    def st8(T,reg):
        A(f's_mov_b32 s{sA+9}, {T*57344}')
        A(f'buffer_store_dwordx2 v[{reg}:{reg+1}], v{P.H8}, s[{sWS}:{sWS+3}], s{sA+9} offen',tag='H1S')
    epilogueC(A,st16,st8)
    A.wait_vm_all()
    return finish(A,'c')

def build_kD():
    A=Asm(); P=PB
    prologue(A)
    A(f's_cmp_ge_u32 s{sC}, 14\ns_cbranch_scc1 L_end')
    setupD(A)
    A('s_waitcnt lgkmcnt(0)')
    for kap in range(20):
        for kh in range(2):
            for t,tag in dmaW2(kh,kap,w2slot(kh,kap),'W2'): A(t,tag=tag)
    loadsD_res(A)
    for kap in range(RING):
        for t,tag in loadsD_h1(kap): A(t,tag=tag)
    A.wait_vm('W2'); A.barrier()
    finish_stats(A,P.ST,P.G4,P.T0,None)
    mainD(A); reduce2(A)
    epilogueD(A)
    A.wait_vm_all()
    return finish(A,'d')

def build_list():
    ks=[('ka_kernel',build_kA()),('kb_kernel',build_kB()),('kc_kernel',build_kC()),('kd_kernel',build_kD())]
    lines=[f'; @launch kernel={n} grid=(256,1,1) block=(256,1,1) lds={LDS_BYTES}' for n,_ in ks]
    return file_text(lines,[kernel_text(n,b) for n,b in ks])

if __name__=='__main__':
    open('k4.s','w').write(build_list())
```

```python
from kern import *
def build(nextra):
    ks=[('ka_kernel',build_kA()),('kb_kernel',build_kB()),('kc_kernel',build_kC()),('kd_kernel',build_kD())]
    A=Asm(); A('s_endpgm');
    ks2=ks+[('ke_kernel',A.text())]
    lines=[f'; @launch kernel={n} grid=(256,1,1) block=(256,1,1) lds={LDS_BYTES}' for n,_ in ks]
    lines+=[f'; @launch kernel=ke_kernel grid=(256,1,1) block=(256,1,1) lds=0']*nextra
    return file_text(lines,[kernel_text(n,b) for n,b in (ks2 if nextra else ks)])
for n in (1,4):
    open(f'k4_e{n}.s','w').write(build(n))
```
